```python
import torch

def _softmax(x, axis=-1):
    return torch.softmax(x, dim=axis)

def _gelu(x):
    return torch.nn.functional.gelu(x, approximate='tanh')

def _silu(x):
    return torch.nn.functional.silu(x)

def _sigmoid(x):
    return torch.sigmoid(x)

def _layernorm(x, axis=-1, eps=1e-05):
    m = x.mean(dim=axis, keepdim=True)
    v = x.var(dim=axis, keepdim=True, unbiased=False)
    return (x - m) / torch.sqrt(v + eps)

def _scatter_add(tgt, idx, src, axis=0):
    return tgt.clone().index_add_(axis, idx, src)

def _segment_sum(src, seg, n):
    out = torch.zeros((n,) + src.shape[1:], dtype=src.dtype)
    return out.index_add_(0, seg, src)

def _pad(x, pw):
    flat = tuple((v for pair in reversed(pw) for v in pair))
    return torch.nn.functional.pad(x, flat)
kernel_name = 'sequential_preLN__memory_aug_recurrent_mem_tr__glu_gated_geglu__prompt'

def setup_inputs():

    _w = lambda a: (lambda t: t.to(torch.bfloat16) if t.is_floating_point() else t)(torch.as_tensor(a))

    def _A_setup():
        B, S, Dm = (1, 2048, 640)
        H, Dh = (32, 192)
        M, seg = (8, 32)
        seg = min(seg, S)
        S = S // seg * seg
        return {'x': _w((lambda *s: torch.randn(*s, dtype=torch.bfloat16) * 0.05)(B, S, Dm)), 'mem0': _w((lambda *s: torch.randn(*s, dtype=torch.bfloat16) * 0.2)(B, M, Dm)), 'Wq': _w((lambda *s: torch.randn(*s, dtype=torch.bfloat16) * 1.6)(Dm, H, Dh) * Dm ** (-0.5)), 'Wk': _w((lambda *s: torch.randn(*s, dtype=torch.bfloat16) * 1.6)(Dm, H, Dh) * Dm ** (-0.5)), 'Wv': _w((lambda *s: torch.randn(*s, dtype=torch.bfloat16) * 0.2)(Dm, H, Dh) * Dm ** (-0.5)), 'Wo': _w((lambda *s: torch.randn(*s, dtype=torch.bfloat16) * 0.2)(H, Dh, Dm) * (H * Dh) ** (-0.5)), 'seg_len': seg}
    _A_in = _A_setup()

    def _B_setup():
        B, S, Dm, Df = (1, 2048, 640, 1536)
        return {'x': _w((lambda *s: torch.randn(*s, dtype=torch.bfloat16) * 0.05)(B, S, Dm)), 'w_gate': _w((lambda *s: torch.randn(*s, dtype=torch.bfloat16) * 0.4)(Dm, Df) * Dm ** (-0.5)), 'w_up': _w((lambda *s: torch.randn(*s, dtype=torch.bfloat16) * 0.4)(Dm, Df) * Dm ** (-0.5)), 'w_down': _w((lambda *s: torch.randn(*s, dtype=torch.bfloat16) * 0.4)(Df, Dm) * Df ** (-0.5))}
    _B_in = _B_setup()
    return {'A_x': _A_in['x'], 'A_mem0': _A_in['mem0'], 'A_Wq': _A_in['Wq'], 'A_Wk': _A_in['Wk'], 'A_Wv': _A_in['Wv'], 'A_Wo': _A_in['Wo'], 'A_seg_len': _A_in['seg_len'], 'B_x': _B_in['x'], 'B_w_gate': _B_in['w_gate'], 'B_w_up': _B_in['w_up'], 'B_w_down': _B_in['w_down']}

def reference(A_x, A_mem0, A_Wq, A_Wk, A_Wv, A_Wo, A_seg_len, B_x, B_w_gate, B_w_up, B_w_down):

    def _A_ref(x, mem0, Wq, Wk, Wv, Wo, seg_len):
        B, S, Dm = x.shape
        H, Dh = (Wq.shape[1], Wq.shape[2])
        M = mem0.shape[1]
        scale = Dh ** (-0.5)
        n_seg = S // seg_len
        L = M + seg_len
        idx = torch.arange(L)
        mask = (idx[:, None] < M) | (idx[:, None] >= idx[None, :])
        mem = mem0
        outs = []
        for s in range(n_seg):
            xs = x[:, s * seg_len:(s + 1) * seg_len, :].clone()
            h = torch.concatenate([mem, xs], axis=1)
            q = torch.einsum('btd,dhe->bhte', h, Wq)
            k = torch.einsum('btd,dhe->bhte', h, Wk)
            v = torch.einsum('btd,dhe->bhte', h, Wv)
            scores = torch.einsum('bhqe,bhke->bhqk', q, k) * scale
            scores = torch.where(mask[None, None], scores, -1000000000.0)
            p = _softmax(scores, axis=-1)
            o = torch.einsum('bhqk,bhke->bhqe', p, v)
            o = torch.einsum('bhte,hed->btd', o, Wo)
            mem = o[:, :M, :].clone()
            outs.append(o[:, M:, :])
        return torch.concatenate(outs, axis=1)

    def _B_ref(x, w_gate, w_up, w_down):
        g = torch.einsum('bsd,df->bsf', x, w_gate)
        u = torch.einsum('bsd,df->bsf', x, w_up)
        h = _gelu(g) * u
        return torch.einsum('bsf,fd->bsd', h, w_down)
    x = A_x
    h = x + _A_ref(_layernorm(x, axis=-1), A_mem0, A_Wq, A_Wk, A_Wv, A_Wo, A_seg_len)
    h2 = h + _B_ref(_layernorm(h, axis=-1), B_w_gate, B_w_up, B_w_down)
    return h2
```

```python
from gen_common import *

SCALE = DH ** -0.5
LOG2E = math.log2(math.e)


def softmax_cols(a, D, ntiles_j, valid_fn, T, BP16, BP32):
    regs = [(jt, r, D[jt] + r) for jt in range(ntiles_j) for r in range(4)]
    for jt in range(ntiles_j):
        d = D[jt]
        a('v_cvt_pk_bf16_f32 v%d, v%d, v%d' % (T, d, d + 1))
        a('v_cvt_pk_bf16_f32 v%d, v%d, v%d' % (T + 1, d + 2, d + 3))
        a('v_lshlrev_b32 v%d, 16, v%d' % (d, T))
        a('v_and_b32 v%d, 0xffff0000, v%d' % (d + 1, T))
        a('v_lshlrev_b32 v%d, 16, v%d' % (d + 2, T + 1))
        a('v_and_b32 v%d, 0xffff0000, v%d' % (d + 3, T + 1))
        for r in range(4):
            a('v_mul_f32 v%d, 0x%08x, v%d' % (d + r, f32bits(SCALE), d + r))
        a('v_cvt_pk_bf16_f32 v%d, v%d, v%d' % (T, d, d + 1))
        a('v_cvt_pk_bf16_f32 v%d, v%d, v%d' % (T + 1, d + 2, d + 3))
        a('v_lshlrev_b32 v%d, 16, v%d' % (d, T))
        a('v_and_b32 v%d, 0xffff0000, v%d' % (d + 1, T))
        a('v_lshlrev_b32 v%d, 16, v%d' % (d + 2, T + 1))
        a('v_and_b32 v%d, 0xffff0000, v%d' % (d + 3, T + 1))
    a('v_mov_b32 v%d, 0x%08x' % (T + 2, f32bits(-1e9)))
    for jt, r, reg in regs:
        m = valid_fn(jt, r)
        if m is not None:
            a('v_cndmask_b32 v%d, v%d, v%d, %s' % (reg, T + 2, reg, m))
    a('v_max_f32 v%d, v%d, v%d' % (T, regs[0][2], regs[1][2]))
    for _, _, reg in regs[2:]:
        a('v_max_f32 v%d, v%d, v%d' % (T, T, reg))
    a('ds_bpermute_b32 v%d, v%d, v%d' % (T + 1, BP16, T))
    a('s_waitcnt lgkmcnt(0)')
    a('v_max_f32 v%d, v%d, v%d' % (T, T, T + 1))
    a('ds_bpermute_b32 v%d, v%d, v%d' % (T + 1, BP32, T))
    a('s_waitcnt lgkmcnt(0)')
    a('v_max_f32 v%d, v%d, v%d' % (T, T, T + 1))
    for _, _, reg in regs:
        a('v_sub_f32 v%d, v%d, v%d' % (reg, reg, T))
        a('v_mul_f32 v%d, 0x%08x, v%d' % (reg, f32bits(LOG2E), reg))
    for _, _, reg in regs:
        a('v_exp_f32 v%d, v%d' % (reg, reg))
    a.nop(1)
    a('v_add_f32 v%d, v%d, v%d' % (T, regs[0][2], regs[1][2]))
    for _, _, reg in regs[2:]:
        a('v_add_f32 v%d, v%d, v%d' % (T, T, reg))
    a('ds_bpermute_b32 v%d, v%d, v%d' % (T + 1, BP16, T))
    a('s_waitcnt lgkmcnt(0)')
    a('v_add_f32 v%d, v%d, v%d' % (T, T, T + 1))
    a('ds_bpermute_b32 v%d, v%d, v%d' % (T + 1, BP32, T))
    a('s_waitcnt lgkmcnt(0)')
    a('v_add_f32 v%d, v%d, v%d' % (T, T, T + 1))
    a('v_rcp_f32 v%d, v%d' % (T, T))
    a.nop(1)
    for _, _, reg in regs:
        a('v_mul_f32 v%d, v%d, v%d' % (reg, reg, T))


def gen_attnp(a):
    name = 'attnp_kernel'
    grid = NSEG * H // 4
    kernel_begin(a, name)
    load_srd(a, 4, 'ws')
    a('s_waitcnt lgkmcnt(0)')
    fin_srd(a, 4, 'ws')
    a('s_cmp_ge_u32 s2, %d' % grid)
    a('s_cbranch_scc1 attnp_done')
    a('s_lshr_b32 s16, s2, 3')
    a('s_and_b32 s17, s2, 7')
    L15, Q, HH = 1, 2, 3
    KA0 = 4
    QA0 = 7
    BP16, BP32 = 9, 10
    T = 11
    KF = 20
    QF = 92
    D = 140
    a('v_and_b32 v%d, 15, v0' % L15)
    a('v_bfe_u32 v%d, v0, 4, 2' % Q)
    a('v_lshrrev_b32 v%d, 6, v0' % HH)
    a('v_lshl_add_u32 v%d, s17, 2, v%d' % (HH, HH))
    a('v_and_b32 v%d, 63, v0' % T)
    a('v_xor_b32 v%d, 16, v%d' % (BP16, T))
    a('v_lshlrev_b32 v%d, 2, v%d' % (BP16, BP16))
    a('v_xor_b32 v%d, 32, v%d' % (BP32, T))
    a('v_lshlrev_b32 v%d, 2, v%d' % (BP32, BP32))
    a('v_lshl_add_u32 v%d, s16, 5, v%d' % (T, HH))
    a('v_lshl_add_u32 v%d, v%d, 3, v%d' % (T + 1, T, L15))
    a('v_mul_u32_u24 v%d, 384, v%d' % (T + 1, T + 1))
    a('v_add_u32 v%d, %d, v%d' % (T + 1, WS['KM'], T + 1))
    a('v_lshl_add_u32 v%d, v%d, 4, v%d' % (T + 1, Q, T + 1))
    a('v_mul_u32_u24 v%d, 384, v%d' % (T + 2, HH))
    a('v_lshl_add_u32 v%d, v%d, 4, v%d' % (T + 2, Q, T + 2))
    a('s_lshl_b32 s18, s16, 5')
    for jt in range(3):
        a('v_add_u32 v%d, %d, v%d' % (T + 3, jt * 16 - 8, L15))
        a('v_max_i32 v%d, 0, v%d' % (T + 3, T + 3))
        a('v_min_i32 v%d, 31, v%d' % (T + 3, T + 3))
        a('v_add_u32 v%d, s18, v%d' % (T + 3, T + 3))
        a('v_mul_u32_u24 v%d, 36864, v%d' % (T + 3, T + 3))
        a('v_add_u32 v%d, v%d, v%d' % (T + 3, T + 3, T + 2))
        a('v_add_u32 v%d, %d, v%d' % (KA0 + jt, WS['QKV'] + HD * 2, T + 3))
    a('v_cmp_gt_u32 vcc, 8, v%d' % L15)
    a.nop(2)
    a('v_cndmask_b32 v%d, v%d, v%d, vcc' % (KA0, KA0, T + 1))
    for tt in range(2):
        a('v_add_u32 v%d, %d, v%d' % (T + 3, tt * 16, L15))
        a('v_add_u32 v%d, s18, v%d' % (T + 3, T + 3))
        a('v_mul_u32_u24 v%d, 36864, v%d' % (T + 3, T + 3))
        a('v_add_u32 v%d, v%d, v%d' % (T + 3, T + 3, T + 2))
        a('v_add_u32 v%d, %d, v%d' % (QA0 + tt, WS['QKV'], T + 3))
    for ks in range(6):
        for jt in range(3):
            a('buffer_load_dwordx4 %s, v%d, s[4:7], 0 offen offset:%d' % (vr(KF + (jt * 6 + ks) * 4, 4), KA0 + jt, ks * 64))
        for tt in range(2):
            a('buffer_load_dwordx4 %s, v%d, s[4:7], 0 offen offset:%d' % (vr(QF + (tt * 6 + ks) * 4, 4), QA0 + tt, ks * 64))
    for i in range(24):
        a('v_mov_b32 v%d, 0' % (D + i))
    for ks in range(6):
        a('s_waitcnt vmcnt(%d)' % (5 * (5 - ks)))
        for tt in range(2):
            for jt in range(3):
                d = D + (tt * 3 + jt) * 4
                a('v_mfma_f32_16x16x32_bf16 %s, %s, %s, %s' % (vr(d, 4), vr(KF + (jt * 6 + ks) * 4, 4),
                                                             vr(QF + (tt * 6 + ks) * 4, 4), vr(d, 4)))
    a.nop(8)
    a('v_lshlrev_b32 v%d, 2, v%d' % (T + 4, Q))
    for tt in range(2):
        a('v_add_u32 v%d, %d, v%d' % (T + 5, tt * 16, L15))
        a('v_sub_u32 v%d, v%d, v%d' % (T + 5, T + 5, T + 4))
        masks = {}
        sreg = 20
        for jt in range(3):
            for r in range(4):
                c = jt * 16 + r - 8
                a('v_cmp_le_i32 %s, %d, v%d' % (sr(sreg, 2), c, T + 5))
                if jt == 2:
                    a('v_cmp_gt_u32 vcc, 2, v%d' % Q)
                    a.nop(2)
                    a('s_and_b64 %s, %s, vcc' % (sr(sreg, 2), sr(sreg, 2)))
                masks[(jt, r)] = sr(sreg, 2)
                sreg += 2
        a.nop(2)
        softmax_cols(a, [D + (tt * 3 + jt) * 4 for jt in range(3)], 3, lambda jt, r: masks[(jt, r)], T, BP16, BP32)
    a('v_mul_u32_u24 v%d, 80, v%d' % (T + 5, HH))
    a('v_lshl_add_u32 v%d, v%d, 3, v%d' % (T + 5, Q, T + 5))
    for tt in range(2):
        a('v_add_u32 v%d, %d, v%d' % (T + 6, tt * 16, L15))
        a('v_add_u32 v%d, s18, v%d' % (T + 6, T + 6))
        a('v_mul_u32_u24 v%d, 2560, v%d' % (T + 6, T + 6))
        a('v_add_u32 v%d, v%d, v%d' % (T + 6, T + 6, T + 5))
        a('v_add_u32 v%d, %d, v%d' % (T + 6, WS['PX'], T + 6))
        for jt in range(3):
            d = D + (tt * 3 + jt) * 4
            t2 = T + 7 + 0
            a('v_cvt_pk_bf16_f32 v%d, v%d, v%d' % (d, d, d + 1))
            a('v_cvt_pk_bf16_f32 v%d, v%d, v%d' % (d + 1, d + 2, d + 3))
            if jt == 2:
                a('v_cmp_gt_u32 vcc, 2, v%d' % Q)
                a('s_and_saveexec_b64 s[20:21], vcc')
            a('buffer_store_dwordx2 %s, v%d, s[4:7], 0 offen offset:%d' % (vr(d, 2), T + 6, jt * 32))
            if jt == 2:
                a('s_mov_b64 exec, s[20:21]')
    a.label('attnp_done')
    a('s_endpgm')
    return name, kernel_desc(name, 164, 48), grid


def gen_attno(a):
    name = 'attno_kernel'
    grid = NSEG * 5
    kernel_begin(a, name)
    load_srd(a, 4, 'ws')
    load_srd(a, 8, 'x')
    a('s_waitcnt lgkmcnt(0)')
    fin_srd(a, 4, 'ws')
    fin_srd(a, 8, 'x')
    a('s_cmp_ge_u32 s2, %d' % grid)
    a('s_cbranch_scc1 attno_done')
    a('s_mul_hi_u32 s16, s2, %d' % ((2 ** 32 + 4) // 5))
    a('s_mul_i32 s17, s16, 5')
    a('s_sub_u32 s17, s2, s17')
    L15, Q, N0 = 1, 2, 3
    WA = 4
    PA = 9
    T = 11
    D = 20
    F = 36
    DEPTH = 8
    a('v_and_b32 v%d, 15, v0' % L15)
    a('v_bfe_u32 v%d, v0, 4, 2' % Q)
    a('v_lshrrev_b32 v%d, 6, v0' % N0)
    a('v_lshlrev_b32 v%d, 5, v%d' % (N0, N0))
    a('s_lshl_b32 s18, s17, 7')
    a('v_add_u32 v%d, s18, v%d' % (N0, N0))
    for m in range(5):
        a('v_add_u32 v%d, %d, v%d' % (T, 4 * m, Q))
        a('v_mul_u32_u24 v%d, 52, v%d' % (T + 1, T))
        a('v_lshrrev_b32 v%d, 8, v%d' % (T + 1, T + 1))
        a('v_mul_u32_u24 v%d, 5, v%d' % (T + 2, T + 1))
        a('v_sub_u32 v%d, v%d, v%d' % (T + 2, T, T + 2))
        a('v_mul_u32_u24 v%d, 640, v%d' % (T + 1, T + 1))
        a('v_add_u32 v%d, v%d, v%d' % (T + 1, T + 1, N0))
        a('v_add_u32 v%d, v%d, v%d' % (T + 1, T + 1, L15))
        a('v_mul_u32_u24 v%d, 80, v%d' % (T + 1, T + 1))
        a('v_lshl_add_u32 v%d, v%d, 4, v%d' % (WA + m, T + 2, T + 1))
    a('s_mul_i32 s19, s16, %d' % (32 * 640 * 80))
    a('s_add_u32 s19, s19, %d' % WS['WT'])
    a('s_mul_i32 s20, s16, %d' % (32 * 2560))
    a('s_add_u32 s20, s20, %d' % WS['PX'])
    a('v_mul_u32_u24 v%d, 2560, v%d' % (PA, L15))
    a('v_lshl_add_u32 v%d, v%d, 4, v%d' % (PA, Q, PA))
    a('v_add_u32 v%d, %d, v%d' % (PA + 1, 16 * 2560, PA))
    for i in range(16):
        a('v_mov_b32 v%d, 0' % (D + i))

    def issue(k):
        f = F + (k % DEPTH) * 16
        m, blk = k % 5, k // 5
        a('s_add_u32 s21, s19, %d' % (blk * 4 * 640 * 80))
        a('buffer_load_dwordx4 %s, v%d, s[4:7], s21 offen' % (vr(f, 4), WA + m))
        a('buffer_load_dwordx4 %s, v%d, s[4:7], s21 offen offset:%d' % (vr(f + 4, 4), WA + m, 16 * 80))
        a('buffer_load_dwordx4 %s, v%d, s[4:7], s20 offen offset:%d' % (vr(f + 8, 4), PA, k * 64))
        a('buffer_load_dwordx4 %s, v%d, s[4:7], s20 offen offset:%d' % (vr(f + 12, 4), PA + 1, k * 64))

    NK = 40
    for k in range(DEPTH - 1):
        issue(k)
    for k in range(NK):
        if k + DEPTH - 1 < NK:
            issue(k + DEPTH - 1)
            a('s_waitcnt vmcnt(%d)' % (4 * (DEPTH - 1)))
        else:
            a('s_waitcnt vmcnt(%d)' % (4 * (NK - 1 - k)))
        f = F + (k % DEPTH) * 16
        for nt in range(2):
            for tt in range(2):
                d = D + (nt * 2 + tt) * 4
                a('v_mfma_f32_16x16x32_bf16 %s, %s, %s, %s' % (vr(d, 4), vr(f + 4 * nt, 4), vr(f + 8 + 4 * tt, 4), vr(d, 4)))
    a.nop(8)
    a('s_lshl_b32 s18, s16, 5')
    a('v_add_u32 v%d, s18, v%d' % (T, L15))
    a('v_mul_u32_u24 v%d, 1280, v%d' % (T, T))
    a('v_lshl_add_u32 v%d, v%d, 2, v%d' % (T + 1, Q, N0))
    a('v_lshl_add_u32 v%d, v%d, 1, v%d' % (T, T + 1, T))
    a('s_mov_b32 s22, %d' % WS['HB'])
    a('s_mov_b32 s23, %d' % (16 * 1280))
    a('s_add_u32 s24, s22, s23')
    X = F
    for nt in range(2):
        for tt in range(2):
            a('buffer_load_dwordx2 %s, v%d, s[8:11], %s offen offset:%d' % (vr(X + (nt * 2 + tt) * 2, 2), T, 's23' if tt else '0', nt * 32))
    a('s_waitcnt vmcnt(0)')
    for nt in range(2):
        for tt in range(2):
            d = D + (nt * 2 + tt) * 4
            xb = X + (nt * 2 + tt) * 2
            R = X + 8
            a('v_cvt_pk_bf16_f32 v%d, v%d, v%d' % (R, d, d + 1))
            a('v_cvt_pk_bf16_f32 v%d, v%d, v%d' % (R + 1, d + 2, d + 3))
            for r in range(4):
                op = ('v_and_b32 v%d, 0xffff0000, v%d' if (r & 1) else 'v_lshlrev_b32 v%d, 16, v%d')
                a(op % (R + 2 + r, R + (r >> 1)))
                a(op % (R + 6 + r, xb + (r >> 1)))
                a('v_add_f32 v%d, v%d, v%d' % (R + 2 + r, R + 2 + r, R + 6 + r))
            a('v_cvt_pk_bf16_f32 v%d, v%d, v%d' % (d, R + 2, R + 3))
            a('v_cvt_pk_bf16_f32 v%d, v%d, v%d' % (d + 1, R + 4, R + 5))
            a('buffer_store_dwordx2 %s, v%d, s[4:7], %s offen offset:%d' % (vr(d, 2), T, 's24' if tt else 's22', nt * 32))
    a.label('attno_done')
    a('s_endpgm')
    return name, kernel_desc(name, F + DEPTH * 16, 40), grid
```

```python
from gen_common import *
from gen_attn import softmax_cols

CHAIN_GRID = 104
CHAIN_LDS = 163840
NLDSW = 18
L_W = 0
L_MEM = 73728
MEMSTR = 1312
L_Q = L_MEM + 8 * MEMSTR
KSTR = 416
L_KM = L_Q + 8 * KSTR
L_KX = L_KM + 8 * KSTR
L_END = L_KX + 2 * 32 * KSTR
assert L_END <= CHAIN_LDS
TIMEOUT = 1 << 22

STA = 32
STB = 48
ACC = 64
WV = 104
NVW = 38


class LdsQ:
    def __init__(self, a):
        self.a = a
        self.q = []

    def issue(self, tag, text):
        self.a(text)
        self.q.append(tag)

    def wait(self, tag):
        if tag not in self.q:
            return
        idx = self.q.index(tag)
        n = len(self.q) - 1 - idx
        self.a('s_waitcnt lgkmcnt(%d)' % n)
        self.q = self.q[idx + 1:]


def place_weights(nfr):
    loc = []
    na = nv = nl = 0
    step = nfr / float(NLDSW)
    lset = set(int(step * i + step / 2) for i in range(NLDSW))
    assert len(lset) == NLDSW
    for u in range(nfr):
        if u in lset:
            loc.append(('l', nl)); nl += 1
        elif na < 64:
            loc.append(('a', na)); na += 1
        else:
            loc.append(('v', nv)); nv += 1
    assert nv <= NVW, nv
    return loc


def wreg(loc):
    k, i = loc
    if k == 'a':
        return ar(4 * i, 4)
    if k == 'v':
        return vr(WV + 4 * i, 4)
    raise ValueError


def emit_poll_mem(a, PG, PL, lbl, done_lbl):
    a('s_mov_b32 s31, 0')
    a.label(lbl)
    for j in range(3):
        a('buffer_load_dwordx4 %s, v%d, s[4:7], s30 offen sc1' % (vr(STB + 4 * j, 4), PG + j))
    a('s_waitcnt vmcnt(0)')
    a('v_max3_u32 v%d, v%d, v%d, v%d' % (STB + 12, STB, STB + 1, STB + 2))
    for j in range(3, 11, 2):
        a('v_max3_u32 v%d, v%d, v%d, v%d' % (STB + 12, STB + 12, STB + j, STB + j + 1))
    a('v_max_u32 v%d, v%d, v%d' % (STB + 12, STB + 12, STB + 11))
    a('v_cmp_eq_u32 vcc, -1, v%d' % (STB + 12))
    a('s_add_u32 s31, s31, 1')
    a('s_cmp_ge_u32 s31, %d' % TIMEOUT)
    a('s_cbranch_scc1 %s' % done_lbl)
    a('s_cbranch_vccnz %s' % lbl)
    for j in range(3):
        a('ds_write_b128 v%d, %s' % (PL + j, vr(STB + 4 * j, 4)))
    a('s_waitcnt lgkmcnt(0)')
    a('s_barrier')


def setup_mem_poll(a, PG, PL, WID, T):
    a('v_and_b32 v%d, 63, v0' % T)
    for j in range(3):
        a('v_add_u32 v%d, %d, v%d' % (T + 1, 64 * j, T))
        a('v_min_u32 v%d, 159, v%d' % (T + 1, T + 1))
        a('v_mul_u32_u24 v%d, 205, v%d' % (T + 2, T + 1))
        a('v_lshrrev_b32 v%d, 12, v%d' % (T + 2, T + 2))
        a('v_mul_u32_u24 v%d, 20, v%d' % (T + 3, T + 2))
        a('v_sub_u32 v%d, v%d, v%d' % (T + 3, T + 1, T + 3))
        a('v_mul_u32_u24 v%d, 20, v%d' % (T + 4, WID))
        a('v_add_u32 v%d, v%d, v%d' % (T + 3, T + 3, T + 4))
        a('v_lshlrev_b32 v%d, 4, v%d' % (T + 3, T + 3))
        a('v_mul_u32_u24 v%d, 1280, v%d' % (PG + j, T + 2))
        a('v_add_u32 v%d, v%d, v%d' % (PG + j, PG + j, T + 3))
        a('v_mul_u32_u24 v%d, %d, v%d' % (PL + j, MEMSTR, T + 2))
        a('v_add_u32 v%d, v%d, v%d' % (PL + j, PL + j, T + 3))
        a('v_add_u32 v%d, %d, v%d' % (PL + j, L_MEM, PL + j))


def load_weights(a, frags, loc, LWB, tmp):
    pend = []
    for u, (va, so, imm) in enumerate(frags):
        k, i = loc[u]
        if k == 'l':
            a('buffer_load_dwordx4 %s, v%d, s[4:7], %s offen offset:%d' % (vr(tmp, 4), va, so, imm))
            a('s_waitcnt vmcnt(0)')
            a('ds_write_b128 v%d, %s offset:%d' % (LWB, vr(tmp, 4), 1024 * i))
            a('s_waitcnt lgkmcnt(0)')
        else:
            a('buffer_load_dwordx4 %s, v%d, s[4:7], %s offen offset:%d' % (wreg(loc[u]), va, so, imm))
    a('s_waitcnt vmcnt(0)')


def gen_chain(a):
    name = 'chain_kernel'
    kernel_begin(a, name)
    load_srd(a, 4, 'ws')
    a('s_waitcnt lgkmcnt(0)')
    fin_srd(a, 4, 'ws')
    a('s_mov_b32 s40, 0x00ff00ff')
    a('s_mov_b32 s41, 0x00ff00ff')
    a('s_mov_b32 s42, -1')
    a('s_mov_b32 s43, 0')
    a('s_cmp_ge_u32 s2, %d' % CHAIN_GRID)
    a('s_cbranch_scc1 chain_done')
    a('s_cmp_ge_u32 s2, 64')
    a('s_cbranch_scc1 chain_red')
    a('s_cmp_ge_u32 s2, 32')
    a('s_cbranch_scc1 chain_vo')
    gen_qk(a)
    gen_vo(a)
    gen_red(a)
    a.label('chain_done')
    a('s_endpgm')
    return name, kernel_desc(name, 256, 48, agpr=256), CHAIN_GRID


def mfma_phase(a, lq, seq, loc, u0, LWB, bfrag_fn, nb, acc_of, b_is_second=True):
    n = len(seq)
    lpos = [i for i in range(n) if loc[u0 + i][0] == 'l']
    nl_issued = 0

    def issue_l():
        nonlocal nl_issued
        if nl_issued < len(lpos):
            i = lpos[nl_issued]
            slot = nl_issued % 4
            lq.issue(('w', nl_issued), 'ds_read_b128 %s, v%d offset:%d' % (vr(STB + 4 * slot, 4), LWB, 1024 * loc[u0 + i][1]))
            nl_issued += 1

    nb_issued = 0

    def issue_b():
        nonlocal nb_issued
        if nb_issued < nb:
            slot = nb_issued % 4
            lq.issue(('b', nb_issued), bfrag_fn(nb_issued, vr(STA + 4 * slot, 4)))
            nb_issued += 1

    for _ in range(3):
        issue_b()
    for _ in range(3):
        issue_l()
    nl_used = 0
    last_b = -1
    for i, (bidx, accidx) in enumerate(seq):
        k, idx = loc[u0 + i]
        if bidx != last_b:
            lq.wait(('b', bidx))
        if k == 'l':
            lq.wait(('w', nl_used))
            w = vr(STB + 4 * (nl_used % 4), 4)
        else:
            w = wreg(loc[u0 + i])
        b = vr(STA + 4 * (bidx % 4), 4)
        c = vr(acc_of(accidx), 4)
        if b_is_second:
            a('v_mfma_f32_16x16x32_bf16 %s, %s, %s, %s' % (c, w, b, c))
        else:
            a('v_mfma_f32_16x16x32_bf16 %s, %s, %s, %s' % (c, b, w, c))
        if k == 'l':
            nl_used += 1
            issue_l()
        if bidx != last_b:
            issue_b()
        last_b = bidx


def gen_qk(a):
    L15, Q, WID = 1, 2, 3
    PG, PL = 4, 7
    MRB = 10
    LWB = 11
    QKW = 12
    KMG = 13
    KXG = 14
    KXL = 18
    BP16, BP32 = 22, 23
    KA = 24
    QA = 27
    PST = 28
    T = STB
    a('v_and_b32 v%d, 15, v0' % L15)
    a('v_bfe_u32 v%d, v0, 4, 2' % Q)
    a('v_lshrrev_b32 v%d, 6, v0' % WID)
    a.nop(1)
    a('v_readfirstlane_b32 s28, v%d' % WID)
    setup_mem_poll(a, PG, PL, WID, T)
    a('v_and_b32 v%d, 7, v%d' % (T, L15))
    a('v_mul_u32_u24 v%d, %d, v%d' % (MRB, MEMSTR, T))
    a('v_lshl_add_u32 v%d, v%d, 4, v%d' % (MRB, Q, MRB))
    a('v_add_u32 v%d, %d, v%d' % (MRB, L_MEM, MRB))
    a('v_and_b32 v%d, 63, v0' % (T + 1))
    a('v_mul_u32_u24 v%d, %d, v%d' % (LWB, NLDSW * 1024, WID))
    a('v_lshl_add_u32 v%d, v%d, 4, v%d' % (LWB, T + 1, LWB))
    a('v_xor_b32 v%d, 16, v%d' % (BP16, T + 1))
    a('v_lshlrev_b32 v%d, 2, v%d' % (BP16, BP16))
    a('v_xor_b32 v%d, 32, v%d' % (BP32, T + 1))
    a('v_lshlrev_b32 v%d, 2, v%d' % (BP32, BP32))
    a('v_lshrrev_b32 v%d, 1, v%d' % (T + 2, WID))
    a('v_mul_u32_u24 v%d, %d, v%d' % (QKW, L_KM - L_Q, T + 2))
    a('v_add_u32 v%d, %d, v%d' % (QKW, L_Q, QKW))
    a('v_mul_u32_u24 v%d, %d, v%d' % (T + 3, KSTR, T))
    a('v_add_u32 v%d, v%d, v%d' % (QKW, QKW, T + 3))
    a('v_and_b32 v%d, 1, v%d' % (T + 4, WID))
    a('v_mul_u32_u24 v%d, 192, v%d' % (T + 4, T + 4))
    a('v_lshl_add_u32 v%d, v%d, 3, v%d' % (T + 4, Q, T + 4))
    a('v_add_u32 v%d, v%d, v%d' % (QKW, QKW, T + 4))
    a('v_mul_u32_u24 v%d, 384, v%d' % (KMG, T))
    a('v_add_u32 v%d, v%d, v%d' % (KMG, KMG, T + 4))
    a('s_mul_i32 s16, s2, %d' % (8 * 384))
    a('s_add_u32 s16, s16, %d' % WS['KM'])
    a('v_add_u32 v%d, s16, v%d' % (KMG, KMG))
    a('v_subrev_u32 v%d, 1, v%d' % (T + 2, WID))
    a('v_max_i32 v%d, 0, v%d' % (T + 2, T + 2))
    a('v_lshl_add_u32 v%d, v%d, 8, v%d' % (T + 2, T + 2, T + 1))
    a('s_mul_i32 s17, s2, 384')
    a('s_add_u32 s17, s17, %d' % (WS['QKV'] + HD * 2))
    for j in range(4):
        a('v_add_u32 v%d, %d, v%d' % (T + 3, 64 * j, T + 2))
        a('v_mul_u32_u24 v%d, 2731, v%d' % (T + 4, T + 3))
        a('v_lshrrev_b32 v%d, 16, v%d' % (T + 4, T + 4))
        a('v_mul_u32_u24 v%d, 24, v%d' % (T + 5, T + 4))
        a('v_sub_u32 v%d, v%d, v%d' % (T + 5, T + 3, T + 5))
        a('v_lshlrev_b32 v%d, 4, v%d' % (T + 5, T + 5))
        a('v_mul_u32_u24 v%d, 36864, v%d' % (KXG + j, T + 4))
        a('v_add_u32 v%d, v%d, v%d' % (KXG + j, KXG + j, T + 5))
        a('v_add_u32 v%d, s17, v%d' % (KXG + j, KXG + j))
        a('v_mul_u32_u24 v%d, %d, v%d' % (KXL + j, KSTR, T + 4))
        a('v_add_u32 v%d, v%d, v%d' % (KXL + j, KXL + j, T + 5))
        a('v_add_u32 v%d, %d, v%d' % (KXL + j, L_KX, KXL + j))
    for jt in range(3):
        a('v_add_u32 v%d, %d, v%d' % (T + 3, jt * 16 - 8, L15))
        a('v_max_i32 v%d, 0, v%d' % (T + 3, T + 3))
        a('v_min_i32 v%d, 31, v%d' % (T + 3, T + 3))
        a('v_mul_u32_u24 v%d, %d, v%d' % (KA + jt, KSTR, T + 3))
        a('v_lshl_add_u32 v%d, v%d, 4, v%d' % (KA + jt, Q, KA + jt))
        a('v_add_u32 v%d, %d, v%d' % (KA + jt, L_KX, KA + jt))
    a('v_mul_u32_u24 v%d, %d, v%d' % (T + 3, KSTR, L15))
    a('v_lshl_add_u32 v%d, v%d, 4, v%d' % (T + 3, Q, T + 3))
    a('v_add_u32 v%d, %d, v%d' % (T + 3, L_KM, T + 3))
    KM0 = 29
    a('v_mov_b32 v%d, v%d' % (KM0, T + 3))
    a('v_mul_u32_u24 v%d, %d, v%d' % (QA, KSTR, T))
    a('v_lshl_add_u32 v%d, v%d, 4, v%d' % (QA, Q, QA))
    a('v_add_u32 v%d, %d, v%d' % (QA, L_Q, QA))
    a('v_mul_u32_u24 v%d, 80, v%d' % (PST, L15))
    a('v_lshl_add_u32 v%d, v%d, 3, v%d' % (PST, Q, PST))
    a('s_mul_i32 s16, s2, 640')
    a('s_add_u32 s16, s16, %d' % WS['PM'])
    a('v_add_u32 v%d, s16, v%d' % (PST, PST))
    WA = 30
    a('v_lshrrev_b32 v%d, 1, v%d' % (T + 2, WID))
    a('v_mul_u32_u24 v%d, 6144, v%d' % (T + 2, T + 2))
    a('v_and_b32 v%d, 1, v%d' % (T + 3, WID))
    a('v_mul_u32_u24 v%d, 96, v%d' % (T + 3, T + 3))
    a('v_add3_u32 v%d, v%d, v%d, v%d' % (T + 2, T + 2, T + 3, L15))
    a('s_mul_i32 s16, s2, 192')
    a('v_add_u32 v%d, s16, v%d' % (T + 2, T + 2))
    a('v_mul_u32_u24 v%d, 1280, v%d' % (WA, T + 2))
    a('v_lshl_add_u32 v%d, v%d, 4, v%d' % (WA, Q, WA))
    for t in range(6):
        a('s_mov_b32 s%d, %d' % (20 + t, WS['WQKVT'] + t * 16 * 1280))
    loc = place_weights(120)
    frags = []
    seq = []
    for k in range(20):
        for t in range(6):
            frags.append((WA, 's%d' % (20 + t), k * 64))
            seq.append((k, t))
    load_weights(a, frags, loc, LWB, STA)
    a('s_mov_b32 s29, 0')
    a('s_cmp_eq_u32 s28, 0')
    a('s_cbranch_scc1 qk_pre_skip')
    for j in range(4):
        a('buffer_load_dwordx4 %s, v%d, s[4:7], 0 offen' % (vr(STA + 4 * j, 4), KXG + j))
    a('s_waitcnt vmcnt(0)')
    for j in range(4):
        a('ds_write_b128 v%d, %s' % (KXL + j, vr(STA + 4 * j, 4)))
    a('s_waitcnt lgkmcnt(0)')
    a.label('qk_pre_skip')
    a.label('qk_loop')
    a('s_mul_i32 s30, s29, 10240')
    a('s_add_u32 s30, s30, %d' % WS['MEM'])
    emit_poll_mem(a, PG, PL, 'qk_poll', 'chain_done')
    for i in range(24):
        a('v_mov_b32 v%d, 0' % (ACC + i))
    lq = LdsQ(a)
    mfma_phase(a, lq, seq, loc, 0, LWB,
               lambda b, reg: 'ds_read_b128 %s, v%d offset:%d' % (reg, MRB, b * 64), 20,
               lambda t: ACC + 4 * t)
    a.nop(8)
    for t in range(6):
        c = ACC + 4 * t
        a('v_cvt_pk_bf16_f32 v%d, v%d, v%d' % (c, c, c + 1))
        a('v_cvt_pk_bf16_f32 v%d, v%d, v%d' % (c + 1, c + 2, c + 3))
        a('ds_write_b64 v%d, %s offset:%d' % (QKW, vr(c, 2), t * 32))
    a('s_cmp_lt_u32 s28, 2')
    a('s_cbranch_scc1 qk_nokm')
    a('s_mul_i32 s16, s29, %d' % (32 * 8 * 384))
    a('s_mov_b64 exec, s[40:41]')
    for t in range(6):
        c = ACC + 4 * t
        a('buffer_store_dwordx2 %s, v%d, s[4:7], s16 offen offset:%d' % (vr(c, 2), KMG, t * 32))
    a('s_mov_b64 exec, -1')
    a.label('qk_nokm')
    a('s_waitcnt lgkmcnt(0)')
    a('s_barrier')
    a('s_cmp_eq_u32 s28, 0')
    a('s_cbranch_scc1 qk_phase2')
    a('s_add_u32 s16, s29, 1')
    a('s_cmp_ge_u32 s16, %d' % NSEG)
    a('s_cbranch_scc1 qk_next')
    a('s_mul_i32 s17, s16, %d' % (32 * 36864))
    a('s_and_b32 s18, s16, 1')
    a('s_mul_i32 s18, s18, %d' % (32 * KSTR))
    for j in range(4):
        a('buffer_load_dwordx4 %s, v%d, s[4:7], s17 offen' % (vr(STA + 4 * j, 4), KXG + j))
    for j in range(4):
        a('v_add_u32 v%d, s18, v%d' % (STB + j, KXL + j))
    a('s_waitcnt vmcnt(0)')
    for j in range(4):
        a('ds_write_b128 v%d, %s' % (STB + j, vr(STA + 4 * j, 4)))
    a('s_waitcnt lgkmcnt(0)')
    a('s_branch qk_next')
    a.label('qk_phase2')
    a('s_and_b32 s18, s29, 1')
    a('s_mul_i32 s18, s18, %d' % (32 * KSTR))
    KR = ACC + 24
    for jt in range(3):
        a('v_add_u32 v%d, s18, v%d' % (KR + jt, KA + jt))
    a('v_cmp_gt_u32 vcc, 8, v%d' % L15)
    a.nop(2)
    a('v_cndmask_b32 v%d, v%d, v%d, vcc' % (KR, KR, KM0))
    D = ACC
    for i in range(12):
        a('v_mov_b32 v%d, 0' % (D + i))
    def rd(ks):
        f = STA + 16 * (ks & 1)
        a('ds_read_b128 %s, v%d offset:%d' % (vr(f, 4), QA, ks * 64))
        for jt in range(3):
            a('ds_read_b128 %s, v%d offset:%d' % (vr(f + 4 + 4 * jt, 4), KR + jt, ks * 64))
    rd(0)
    for ks in range(6):
        if ks + 1 < 6:
            rd(ks + 1)
            a('s_waitcnt lgkmcnt(4)')
        else:
            a('s_waitcnt lgkmcnt(0)')
        f = STA + 16 * (ks & 1)
        for jt in range(3):
            a('v_mfma_f32_16x16x32_bf16 %s, %s, %s, %s' % (vr(D + 4 * jt, 4), vr(f + 4 + 4 * jt, 4), vr(f, 4), vr(D + 4 * jt, 4)))
        if ks + 2 < 6:
            a.nop(4)
    a.nop(8)
    a('v_cmp_gt_u32 s[44:45], 2, v%d' % Q)
    a.nop(2)
    TT = ACC + 28
    softmax_cols(a, [D, D + 4, D + 8], 3, lambda jt, r: 's[44:45]' if jt == 2 else None, TT, BP16, BP32)
    a('s_mul_i32 s16, s29, %d' % (32 * 640))
    a('s_mov_b64 exec, s[40:41]')
    for jt in range(3):
        d = D + 4 * jt
        a('v_cvt_pk_bf16_f32 v%d, v%d, v%d' % (d, d, d + 1))
        a('v_cvt_pk_bf16_f32 v%d, v%d, v%d' % (d + 1, d + 2, d + 3))
        a('v_min_u32 v%d, -2, v%d' % (d, d))
        a('v_min_u32 v%d, -2, v%d' % (d + 1, d + 1))
        if jt == 2:
            a('s_and_b64 exec, exec, s[44:45]')
        a('buffer_store_dwordx2 %s, v%d, s[4:7], s16 offen offset:%d sc1' % (vr(d, 2), PST, jt * 32))
    a('s_mov_b64 exec, -1')
    a.label('qk_next')
    a('s_add_u32 s29, s29, 1')
    a('s_cmp_lt_u32 s29, %d' % NSEG)
    a('s_cbranch_scc1 qk_loop')
    a('s_branch chain_done')


def gen_vo(a):
    a.label('chain_vo')
    a('s_sub_u32 s3, s2, 32')
    L15, Q, WID = 1, 2, 3
    PG, PL = 4, 7
    MRB = 10
    LWB = 11
    VW = 12
    VRB = 13
    UST = 14
    WA1, WA2 = 15, 16
    T = STB
    a('v_and_b32 v%d, 15, v0' % L15)
    a('v_bfe_u32 v%d, v0, 4, 2' % Q)
    a('v_lshrrev_b32 v%d, 6, v0' % WID)
    setup_mem_poll(a, PG, PL, WID, T)
    a('v_and_b32 v%d, 7, v%d' % (T, L15))
    a('v_mul_u32_u24 v%d, %d, v%d' % (MRB, MEMSTR, T))
    a('v_lshl_add_u32 v%d, v%d, 4, v%d' % (MRB, Q, MRB))
    a('v_add_u32 v%d, %d, v%d' % (MRB, L_MEM, MRB))
    a('v_and_b32 v%d, 63, v0' % (T + 1))
    a('v_mul_u32_u24 v%d, %d, v%d' % (LWB, NLDSW * 1024, WID))
    a('v_lshl_add_u32 v%d, v%d, 4, v%d' % (LWB, T + 1, LWB))
    a('v_mul_u32_u24 v%d, %d, v%d' % (VW, KSTR, T))
    a('v_mul_u32_u24 v%d, 96, v%d' % (T + 2, WID))
    a('v_lshl_add_u32 v%d, v%d, 3, v%d' % (T + 2, Q, T + 2))
    a('v_add3_u32 v%d, v%d, v%d, %d' % (VW, VW, T + 2, 0))
    a('v_add_u32 v%d, %d, v%d' % (VW, L_Q, VW))
    a('v_mul_u32_u24 v%d, %d, v%d' % (VRB, KSTR, T))
    a('v_lshl_add_u32 v%d, v%d, 4, v%d' % (VRB, Q, VRB))
    a('v_add_u32 v%d, %d, v%d' % (VRB, L_Q, VRB))
    a('v_mul_u32_u24 v%d, 160, v%d' % (T + 2, WID))
    a('v_add_u32 v%d, v%d, v%d' % (T + 2, T + 2, L15))
    a('v_mul_u32_u24 v%d, 80, v%d' % (UST, T + 2))
    a('v_lshl_add_u32 v%d, v%d, 3, v%d' % (UST, Q, UST))
    a('s_mul_i32 s16, s3, %d' % (640 * 80))
    a('s_add_u32 s16, s16, %d' % WS['WT'])
    a('v_add_u32 v%d, s16, v%d' % (UST, UST))
    a('v_mul_u32_u24 v%d, 48, v%d' % (T + 3, WID))
    a('v_add_u32 v%d, v%d, v%d' % (T + 3, T + 3, L15))
    a('s_mul_i32 s16, s3, 192')
    a('s_add_u32 s16, s16, 12288')
    a('v_add_u32 v%d, s16, v%d' % (T + 3, T + 3))
    a('v_mul_u32_u24 v%d, 1280, v%d' % (WA1, T + 3))
    a('v_lshl_add_u32 v%d, v%d, 4, v%d' % (WA1, Q, WA1))
    for t in range(3):
        a('s_mov_b32 s%d, %d' % (20 + t, WS['WQKVT'] + t * 16 * 1280))
    a('v_mul_u32_u24 v%d, 384, v%d' % (WA2, T + 2))
    a('v_lshl_add_u32 v%d, v%d, 4, v%d' % (WA2, Q, WA2))
    a('s_mul_i32 s16, s3, 245760')
    a('s_add_u32 s16, s16, %d' % WS['WOT'])
    for nt in range(10):
        a('s_add_u32 s%d, s16, %d' % (23 + nt, nt * 16 * 384))
    loc = place_weights(120)
    frags, seq1, seq2 = [], [], []
    for k in range(20):
        for t in range(3):
            frags.append((WA1, 's%d' % (20 + t), k * 64))
            seq1.append((k, t))
    for ks in range(6):
        for nt in range(10):
            frags.append((WA2, 's%d' % (23 + nt), ks * 64))
            seq2.append((ks, nt))
    load_weights(a, frags, loc, LWB, STA)
    a('s_mov_b32 s29, 0')
    a.label('vo_loop')
    a('s_mul_i32 s30, s29, 10240')
    a('s_add_u32 s30, s30, %d' % WS['MEM'])
    emit_poll_mem(a, PG, PL, 'vo_poll', 'chain_done')
    for i in range(12):
        a('v_mov_b32 v%d, 0' % (ACC + i))
    lq = LdsQ(a)
    mfma_phase(a, lq, seq1, loc, 0, LWB,
               lambda b, reg: 'ds_read_b128 %s, v%d offset:%d' % (reg, MRB, b * 64), 20,
               lambda t: ACC + 4 * t)
    a.nop(8)
    for t in range(3):
        c = ACC + 4 * t
        a('v_cvt_pk_bf16_f32 v%d, v%d, v%d' % (c, c, c + 1))
        a('v_cvt_pk_bf16_f32 v%d, v%d, v%d' % (c + 1, c + 2, c + 3))
        a('ds_write_b64 v%d, %s offset:%d' % (VW, vr(c, 2), t * 32))
    a('s_waitcnt lgkmcnt(0)')
    a('s_barrier')
    for i in range(40):
        a('v_mov_b32 v%d, 0' % (ACC + i))
    lq = LdsQ(a)
    mfma_phase(a, lq, seq2, loc, 60, LWB,
               lambda b, reg: 'ds_read_b128 %s, v%d offset:%d' % (reg, VRB, b * 64), 6,
               lambda nt: ACC + 4 * nt, b_is_second=False)
    a.nop(8)
    a('s_mul_i32 s16, s29, %d' % (32 * 640 * 80))
    a('s_mov_b64 exec, s[42:43]')
    for nt in range(10):
        c = ACC + 4 * nt
        a('v_cvt_pk_bf16_f32 v%d, v%d, v%d' % (c, c, c + 1))
        a('v_cvt_pk_bf16_f32 v%d, v%d, v%d' % (c + 1, c + 2, c + 3))
        a('v_min_u32 v%d, -2, v%d' % (c, c))
        a('v_min_u32 v%d, -2, v%d' % (c + 1, c + 1))
        a('s_add_u32 s17, s16, %d' % (nt * 16 * 80))
        a('buffer_store_dwordx2 %s, v%d, s[4:7], s17 offen sc1' % (vr(c, 2), UST))
    a('s_mov_b64 exec, -1')
    a('s_add_u32 s29, s29, 1')
    a('s_cmp_lt_u32 s29, %d' % NSEG)
    a('s_cbranch_scc1 vo_loop')
    a('s_branch chain_done')


def gen_red(a):
    a.label('chain_red')
    a('s_sub_u32 s3, s2, 64')
    L15, Q, WID = 1, 2, 3
    WA = 4
    PA = 14
    MST = 24
    RW = 25
    RR = 26
    T = 27
    D = 36
    F = 40
    a('v_and_b32 v%d, 15, v0' % L15)
    a('v_bfe_u32 v%d, v0, 4, 2' % Q)
    a('v_lshrrev_b32 v%d, 6, v0' % WID)
    a.nop(1)
    a('v_readfirstlane_b32 s28, v%d' % WID)
    a('s_lshl_b32 s16, s3, 4')
    a('v_and_b32 v%d, 7, v%d' % (T + 5, L15))
    for m in range(10):
        a('v_add_u32 v%d, %d, v%d' % (T, 4 * m, Q))
        a('v_mul_u32_u24 v%d, 205, v%d' % (T + 1, T))
        a('v_lshrrev_b32 v%d, 10, v%d' % (T + 1, T + 1))
        a('v_mul_u32_u24 v%d, 5, v%d' % (T + 2, T + 1))
        a('v_sub_u32 v%d, v%d, v%d' % (T + 2, T, T + 2))
        a('v_lshl_add_u32 v%d, v%d, 3, v%d' % (T + 1, WID, T + 1))
        a('v_mul_u32_u24 v%d, 640, v%d' % (T + 3, T + 1))
        a('v_add3_u32 v%d, v%d, s16, v%d' % (T + 3, T + 3, L15))
        a('v_mul_u32_u24 v%d, 80, v%d' % (T + 3, T + 3))
        a('v_lshl_add_u32 v%d, v%d, 4, v%d' % (WA + m, T + 2, T + 3))
        a('v_lshl_add_u32 v%d, v%d, 3, v%d' % (T + 3, T + 1, T + 5))
        a('v_mul_u32_u24 v%d, 80, v%d' % (T + 3, T + 3))
        a('v_lshl_add_u32 v%d, v%d, 4, v%d' % (PA + m, T + 2, T + 3))
    a('v_mul_u32_u24 v%d, 1280, v%d' % (MST, L15))
    a('v_lshl_add_u32 v%d, v%d, 3, v%d' % (MST, Q, MST))
    a('s_lshl_b32 s16, s16, 1')
    a('v_add_u32 v%d, s16, v%d' % (MST, MST))
    a('v_and_b32 v%d, 63, v0' % T)
    a('v_lshlrev_b32 v%d, 4, v%d' % (RR, T))
    a('v_lshl_add_u32 v%d, v%d, 10, v%d' % (RW, WID, RR))
    a('s_mov_b32 s29, 0')
    a.label('red_loop')
    a('s_mul_i32 s16, s29, %d' % (32 * 640 * 80))
    a('s_add_u32 s16, s16, %d' % WS['WT'])
    a('s_mul_i32 s17, s29, %d' % (32 * 640))
    a('s_add_u32 s17, s17, %d' % WS['PM'])
    a('s_mov_b32 s31, 0')
    a.label('red_poll')
    for m in range(10):
        a('buffer_load_dwordx4 %s, v%d, s[4:7], s16 offen sc1' % (vr(F + 8 * m, 4), WA + m))
        a('buffer_load_dwordx4 %s, v%d, s[4:7], s17 offen sc1' % (vr(F + 8 * m + 4, 4), PA + m))
    a('s_waitcnt vmcnt(0)')
    a('v_max3_u32 v%d, v%d, v%d, v%d' % (T, F, F + 1, F + 2))
    for j in range(3, 79, 2):
        a('v_max3_u32 v%d, v%d, v%d, v%d' % (T, T, F + j, F + j + 1))
    a('v_max_u32 v%d, v%d, v%d' % (T, T, F + 79))
    a('v_cmp_eq_u32 vcc, -1, v%d' % T)
    a('s_add_u32 s31, s31, 1')
    a('s_cmp_ge_u32 s31, %d' % TIMEOUT)
    a('s_cbranch_scc1 chain_done')
    a('s_cbranch_vccnz red_poll')
    for i in range(4):
        a('v_mov_b32 v%d, 0' % (D + i))
    a.nop(2)
    for m in range(10):
        a('v_mfma_f32_16x16x32_bf16 %s, %s, %s, %s' % (vr(D, 4), vr(F + 8 * m, 4), vr(F + 8 * m + 4, 4), vr(D, 4)))
    a.nop(8)
    a('s_cmp_eq_u32 s28, 0')
    a('s_cbranch_scc1 red_w0a')
    a('ds_write_b128 v%d, %s' % (RW, vr(D, 4)))
    a('s_waitcnt lgkmcnt(0)')
    a.label('red_w0a')
    a('s_barrier')
    a('s_cmp_eq_u32 s28, 0')
    a('s_cbranch_scc0 red_next')
    for w in range(1, 4):
        a('ds_read_b128 %s, v%d offset:%d' % (vr(F + 4 * w, 4), RR, 1024 * w))
    a('s_waitcnt lgkmcnt(0)')
    for w in range(1, 4):
        for i in range(4):
            a('v_add_f32 v%d, v%d, v%d' % (D + i, D + i, F + 4 * w + i))
    a('v_cvt_pk_bf16_f32 v%d, v%d, v%d' % (D, D, D + 1))
    a('v_cvt_pk_bf16_f32 v%d, v%d, v%d' % (D + 1, D + 2, D + 3))
    a('v_min_u32 v%d, -2, v%d' % (D, D))
    a('v_min_u32 v%d, -2, v%d' % (D + 1, D + 1))
    a('s_add_u32 s16, s29, 1')
    a('s_mul_i32 s16, s16, 10240')
    a('s_add_u32 s16, s16, %d' % WS['MEM'])
    a('s_mov_b64 exec, s[40:41]')
    a('buffer_store_dwordx2 %s, v%d, s[4:7], s16 offen sc1' % (vr(D, 2), MST))
    a('s_mov_b64 exec, -1')
    a.label('red_next')
    a('s_add_u32 s29, s29, 1')
    a('s_cmp_lt_u32 s29, %d' % (NSEG - 1))
    a('s_cbranch_scc1 red_loop')
    a('s_branch chain_done')
```

```python
import math

S, DM, H, DH, M, SEG, DF = 2048, 640, 32, 192, 8, 32, 1536
NSEG = S // SEG
HD = H * DH

KA = dict(x=0, mem0=8, Wq=16, Wk=24, Wv=32, Wo=40, seg=48, bx=56, Wg=64, Wu=72, Wd=80,
          out=88, dbg=96, ws=104)
NBYTES = dict(x=S * DM * 2, mem0=M * DM * 2, Wq=DM * HD * 2, Wk=DM * HD * 2, Wv=DM * HD * 2,
              Wo=HD * DM * 2, Wg=DM * DF * 2, Wu=DM * DF * 2, Wd=DF * DM * 2, out=S * DM * 2,
              dbg=256, ws=268435456)

_off = 0
WS = {}


def _alloc(name, nbytes, align=16384):
    global _off
    _off = (_off + align - 1) // align * align
    WS[name] = _off
    _off += nbytes


_alloc('XN', S * DM * 2)
_alloc('WQKVT', 3 * HD * DM * 2)
_alloc('WOT', H * DM * DH * 2)
_alloc('WGUT', 2 * DF * DM * 2)
_alloc('WDT', DM * DF * 2)
_alloc('QKV', S * 3 * HD * 2)
_alloc('WT', NSEG * H * DM * 80)
_alloc('MEM', (NSEG + 1) * M * DM * 2)
WS['SENT'] = WS['MEM'] + M * DM * 2
_alloc('PM', NSEG * H * M * 80, align=256)
SENT_BYTES = (_off - WS['SENT'] + 16383) // 16384 * 16384
_off = WS['SENT'] + SENT_BYTES
_alloc('KM', NSEG * H * M * DH * 2)
_alloc('PX', NSEG * SEG * H * 40 * 2)
_alloc('HB', S * DM * 2)
_alloc('HN', S * DM * 2)
_alloc('G', S * DF * 2)
WS_END = _off
assert WS_END <= NBYTES['ws'], WS_END


class Asm:
    def __init__(self):
        self.lines = []
        self._lbl = 0

    def __call__(self, s=''):
        for ln in s.strip('\n').split('\n'):
            self.lines.append('    ' + ln.strip() if ln.strip() else '')

    def raw(self, s):
        self.lines.append(s)

    def label(self, name):
        self.lines.append(name + ':')

    def newlabel(self, base='L'):
        self._lbl += 1
        return '%s_%d' % (base, self._lbl)

    def nop(self, n):
        while n > 0:
            k = min(n, 16)
            self('s_nop %d' % (k - 1))
            n -= k

    def text(self):
        return '\n'.join(self.lines) + '\n'


def vr(base, n=1):
    return 'v%d' % base if n == 1 else 'v[%d:%d]' % (base, base + n - 1)


def ar(base, n=1):
    return 'a%d' % base if n == 1 else 'a[%d:%d]' % (base, base + n - 1)


def sr(base, n=1):
    return 's%d' % base if n == 1 else 's[%d:%d]' % (base, base + n - 1)


def kernel_begin(a, name):
    a.raw('.p2align 8')
    a.raw('.globl %s' % name)
    a.raw('.type %s,@function' % name)
    a.label(name)


def kernel_desc(name, vgpr, sgpr=102, accum=None, agpr=0):
    acc_off = (vgpr + 3) // 4 * 4
    if agpr:
        nfv = acc_off + agpr
    else:
        nfv = vgpr
    out = []
    out.append('.amdhsa_kernel %s' % name)
    out.append('  .amdhsa_next_free_vgpr %d' % nfv)
    out.append('  .amdhsa_next_free_sgpr %d' % sgpr)
    out.append('  .amdhsa_accum_offset %d' % acc_off)
    out.append('  .amdhsa_group_segment_fixed_size 0')
    out.append('  .amdhsa_kernarg_size 112')
    out.append('  .amdhsa_user_sgpr_count 2')
    out.append('  .amdhsa_user_sgpr_kernarg_segment_ptr 1')
    out.append('  .amdhsa_system_sgpr_workgroup_id_x 1')
    out.append('.end_amdhsa_kernel')
    return '\n'.join(out)


def load_srd(a, sbase, key):
    a('s_load_dwordx2 %s, s[0:1], %d' % (sr(sbase, 2), KA[key]))


def fin_srd(a, sbase, key):
    a('s_and_b32 s%d, s%d, 0xffff' % (sbase + 1, sbase + 1))
    a('s_mov_b32 s%d, %d' % (sbase + 2, NBYTES[key]))
    a('s_mov_b32 s%d, 0x00020000' % (sbase + 3))


def wave_reduce(a, op, v, tmp, sdst):
    ins = 'v_%s_f32_dpp' % op
    bc = ' bound_ctrl:0' if op == 'add' else ''
    for sh in (1, 2, 4, 8):
        a.nop(2)
        a('%s %s, %s, %s row_shr:%d row_mask:0xf bank_mask:0xf%s' % (ins, vr(v), vr(v), vr(v), sh, bc))
    a.nop(2)
    a('%s %s, %s, %s row_bcast:15 row_mask:0xa bank_mask:0xf' % (ins, vr(v), vr(v), vr(v)))
    a.nop(2)
    a('%s %s, %s, %s row_bcast:31 row_mask:0xc bank_mask:0xf' % (ins, vr(v), vr(v), vr(v)))
    a.nop(1)
    a('v_readlane_b32 %s, %s, 63' % (sr(sdst), vr(v)))
    a.nop(2)


def f32bits(x):
    import struct
    return struct.unpack('<I', struct.pack('<f', x))[0]
```

```python
from gen_common import *


GEMM_LDS = 65536


def gen_gemm(a, cfg):
    name = cfg['name']
    K = cfg['K']
    nk = K // 64
    nxt, nyt, nb = cfg['nxt'], cfg['nyt'], cfg.get('nbatch', 1)
    grid = nxt * nyt * nb
    epi = cfg['epi']
    kernel_begin(a, name)
    load_srd(a, 4, 'ws')
    if epi == 'final':
        load_srd(a, 8, 'out')
    a('s_waitcnt lgkmcnt(0)')
    fin_srd(a, 4, 'ws')
    if epi == 'final':
        fin_srd(a, 8, 'out')
    a('s_cmp_ge_u32 s2, %d' % grid)
    a('s_cbranch_scc1 %s_done' % name)
    a('s_mul_hi_u32 s16, s2, %d' % ((2 ** 32 + nyt - 1) // nyt))
    a('s_mul_i32 s17, s16, %d' % nyt)
    a('s_sub_u32 s17, s2, s17')
    if nb > 1:
        a('s_mul_hi_u32 s18, s16, %d' % ((2 ** 32 + nxt - 1) // nxt))
        a('s_mul_i32 s19, s18, %d' % nxt)
        a('s_sub_u32 s16, s16, s19')
    else:
        a('s_mov_b32 s18, 0')
    xs, ys = cfg['x_stride'], cfg['y_stride']
    a('s_mul_i32 s20, s16, %d' % (128 * xs))
    a('s_add_u32 s20, s20, %d' % cfg['x_base'])
    a('s_mul_i32 s21, s17, %d' % (128 * ys))
    a('s_add_u32 s21, s21, %d' % cfg['y_base'])
    if nb > 1:
        a('s_mul_i32 s22, s18, %d' % cfg['x_bstride'])
        a('s_add_u32 s20, s20, s22')
        a('s_mul_i32 s22, s18, %d' % cfg['y_bstride'])
        a('s_add_u32 s21, s21, s22')
    ACC = 0
    FR = 64
    ST = 128
    GX, GY = 160, 164
    LW = 168
    LRX0, LRX1, LRY0, LRY1 = 169, 170, 171, 172
    T0 = 173
    a('v_lshrrev_b32 v%d, 3, v0' % T0)
    a('v_and_b32 v%d, 7, v0' % (T0 + 1))
    for i in range(4):
        a('v_add_u32 v%d, %d, v%d' % (T0 + 2, 32 * i, T0))
        a('v_mul_u32_u24 v%d, %d, v%d' % (GX + i, xs, T0 + 2)) if xs < (1 << 24) else None
        a('v_lshl_add_u32 v%d, v%d, 4, v%d' % (GX + i, T0 + 1, GX + i))
        a('v_mul_u32_u24 v%d, %d, v%d' % (GY + i, ys, T0 + 2))
        a('v_lshl_add_u32 v%d, v%d, 4, v%d' % (GY + i, T0 + 1, GY + i))
    a('v_and_b32 v%d, 7, v%d' % (T0 + 2, T0))
    a('v_xor_b32 v%d, v%d, v%d' % (T0 + 2, T0 + 2, T0 + 1))
    a('v_lshlrev_b32 v%d, 4, v%d' % (T0 + 2, T0 + 2))
    a('v_lshl_add_u32 v%d, v%d, 7, v%d' % (LW, T0, T0 + 2))
    a('v_lshrrev_b32 v%d, 6, v0' % T0)
    a('v_lshrrev_b32 v%d, 1, v%d' % (T0 + 1, T0))
    a('v_and_b32 v%d, 1, v%d' % (T0 + 2, T0))
    a('v_and_b32 v%d, 15, v0' % (T0 + 3))
    a('v_bfe_u32 v%d, v0, 4, 2' % (T0 + 4))
    a('v_and_b32 v%d, 7, v0' % (T0 + 5))
    a('v_xor_b32 v%d, v%d, v%d' % (T0 + 5, T0 + 5, T0 + 4))
    a('v_lshlrev_b32 v%d, 4, v%d' % (T0 + 5, T0 + 5))
    a('v_lshl_add_u32 v%d, v%d, 6, v%d' % (T0 + 6, T0 + 1, T0 + 3))
    a('v_lshl_add_u32 v%d, v%d, 7, v%d' % (LRX0, T0 + 6, T0 + 5))
    a('v_xor_b32 v%d, 64, v%d' % (LRX1, LRX0))
    a('v_lshl_add_u32 v%d, v%d, 6, v%d' % (T0 + 6, T0 + 2, T0 + 3))
    a('v_lshl_add_u32 v%d, v%d, 7, v%d' % (LRY0, T0 + 6, T0 + 5))
    a('v_add_u32 v%d, 16384, v%d' % (LRY0, LRY0))
    a('v_xor_b32 v%d, 64, v%d' % (LRY1, LRY0))
    for i in range(64):
        a('v_mov_b32 v%d, 0' % (ACC + i))

    def gload(k):
        for i in range(4):
            a('buffer_load_dwordx4 %s, v%d, s[4:7], s20 offen offset:%d' % (vr(ST + 4 * i, 4), GX + i, 128 * k))
        for i in range(4):
            a('buffer_load_dwordx4 %s, v%d, s[4:7], s21 offen offset:%d' % (vr(ST + 16 + 4 * i, 4), GY + i, 128 * k))

    def lwrite(buf):
        for i in range(4):
            a('ds_write_b128 v%d, %s offset:%d' % (LW, vr(ST + 4 * i, 4), buf * 32768 + 4096 * i))
        for i in range(4):
            a('ds_write_b128 v%d, %s offset:%d' % (LW, vr(ST + 16 + 4 * i, 4), buf * 32768 + 16384 + 4096 * i))

    gload(0)
    a('s_waitcnt vmcnt(0)')
    lwrite(0)
    a('s_waitcnt lgkmcnt(0)')
    a('s_barrier')
    for k in range(nk):
        b = k & 1
        if k + 1 < nk:
            gload(k + 1)
        for ks in range(2):
            lx, ly = (LRX0, LRY0) if ks == 0 else (LRX1, LRY1)
            for i in range(4):
                a('ds_read_b128 %s, v%d offset:%d' % (vr(FR + 32 * ks + 4 * i, 4), lx, b * 32768 + 2048 * i))
            for i in range(4):
                a('ds_read_b128 %s, v%d offset:%d' % (vr(FR + 32 * ks + 16 + 4 * i, 4), ly, b * 32768 + 2048 * i))
        for ks in range(2):
            a('s_waitcnt lgkmcnt(%d)' % (8 if ks == 0 else 0))
            for xi in range(4):
                for yi in range(4):
                    c = ACC + (xi * 4 + yi) * 4
                    a('v_mfma_f32_16x16x32_bf16 %s, %s, %s, %s' % (
                        vr(c, 4), vr(FR + 32 * ks + 4 * xi, 4), vr(FR + 32 * ks + 16 + 4 * yi, 4), vr(c, 4)))
        if k + 1 < nk:
            a('s_waitcnt vmcnt(0)')
            lwrite(b ^ 1)
            a('s_waitcnt lgkmcnt(0)')
            a('s_barrier')
    a.nop(8)
    WX, WY, L15, Q = T0 + 1, T0 + 2, T0 + 3, T0 + 4
    E = 64
    a('s_lshl_b32 s22, s16, 7')
    a('s_lshl_b32 s23, s17, 7')
    a('v_lshlrev_b32 v%d, 6, v%d' % (E, WX))
    a('v_lshl_add_u32 v%d, v%d, 2, v%d' % (E, Q, E))
    a('v_add_u32 v%d, s22, v%d' % (E, E))
    a('v_lshl_add_u32 v%d, v%d, 6, v%d' % (E + 1, WY, L15))
    a('v_add_u32 v%d, s23, v%d' % (E + 1, E + 1))
    if epi == 'qkv':
        a('v_mul_u32_u24 v%d, %d, v%d' % (E + 2, 36864, E + 1))
        a('v_lshl_add_u32 v%d, v%d, 1, v%d' % (E + 2, E, E + 2))
        a('s_mov_b32 s24, %d' % WS['QKV'])
        for yi in range(4):
            a('s_add_u32 s25, s24, %d' % (yi * 16 * 36864))
            for xi in range(4):
                c = ACC + (xi * 4 + yi) * 4
                t = E + 4 + 2 * (xi & 1)
                a('v_cvt_pk_bf16_f32 v%d, v%d, v%d' % (t, c, c + 1))
                a('v_cvt_pk_bf16_f32 v%d, v%d, v%d' % (t + 1, c + 2, c + 3))
                a('buffer_store_dwordx2 %s, v%d, s[4:7], s25 offen offset:%d' % (vr(t, 2), E + 2, xi * 32))
    elif epi == 'wt':
        a('v_lshrrev_b32 v%d, 5, v%d' % (E + 2, E))
        a('v_and_b32 v%d, 31, v%d' % (E + 3, E))
        a('v_lshl_add_u32 v%d, v%d, 5, s18' % (E + 2, E + 2))
        a('v_mul_u32_u24 v%d, 640, v%d' % (E + 2, E + 2))
        a('v_add_u32 v%d, v%d, v%d' % (E + 2, E + 2, E + 1))
        a('v_mul_u32_u24 v%d, 80, v%d' % (E + 2, E + 2))
        a('v_lshl_add_u32 v%d, v%d, 1, v%d' % (E + 8, E + 3, E + 2))
        a('s_mov_b32 s24, %d' % WS['WT'])
        for i in range(4):
            a('v_mov_b32 v%d, -1' % (E + 12 + i))
        for yi in range(4):
            for xi in range(4):
                c = ACC + (xi * 4 + yi) * 4
                t = E + 4 + 2 * (xi & 1)
                off = (xi >> 1) * 32 * 640 * 80 + yi * 16 * 80
                a('s_add_u32 s25, s24, %d' % off)
                a('v_cvt_pk_bf16_f32 v%d, v%d, v%d' % (t, c, c + 1))
                a('v_cvt_pk_bf16_f32 v%d, v%d, v%d' % (t + 1, c + 2, c + 3))
                a('buffer_store_dwordx2 %s, v%d, s[4:7], s25 offen offset:%d' % (vr(t, 2), E + 8, 16 + (xi & 1) * 32))
        a('v_cmp_eq_u32 vcc, 0, v%d' % Q)
        a('s_and_saveexec_b64 s[26:27], vcc')
        for yi in range(4):
            for sh in range(2):
                off = sh * 32 * 640 * 80 + yi * 16 * 80
                a('s_add_u32 s25, s24, %d' % off)
                a('buffer_store_dwordx4 %s, v%d, s[4:7], s25 offen' % (vr(E + 12, 4), E + 2))
        a('s_mov_b64 exec, s[26:27]')
    elif epi == 'geglu':
        a('v_lshlrev_b32 v%d, 5, v%d' % (E + 2, WX))
        a('v_lshl_add_u32 v%d, v%d, 2, v%d' % (E + 2, Q, E + 2))
        a('s_lshl_b32 s22, s16, 6')
        a('v_add_u32 v%d, s22, v%d' % (E + 2, E + 2))
        a('v_mul_u32_u24 v%d, 3072, v%d' % (E + 3, E + 1))
        a('v_lshl_add_u32 v%d, v%d, 1, v%d' % (E + 3, E + 2, E + 3))
        a('s_mov_b32 s24, %d' % WS['G'])
        c0 = math.sqrt(2.0 / math.pi)
        a('s_mov_b32 s26, 0x%08x' % f32bits(0.044715))
        a('s_mov_b32 s27, 0x%08x' % f32bits(2.0 * c0 * math.log2(math.e)))
        for yi in range(4):
            a('s_add_u32 s25, s24, %d' % (yi * 16 * 3072))
            for p in range(2):
                cg = ACC + ((2 * p) * 4 + yi) * 4
                cu = ACC + ((2 * p + 1) * 4 + yi) * 4
                R = E + 8
                a('v_cvt_pk_bf16_f32 v%d, v%d, v%d' % (R, cg, cg + 1))
                a('v_cvt_pk_bf16_f32 v%d, v%d, v%d' % (R + 1, cg + 2, cg + 3))
                a('v_cvt_pk_bf16_f32 v%d, v%d, v%d' % (R + 2, cu, cu + 1))
                a('v_cvt_pk_bf16_f32 v%d, v%d, v%d' % (R + 3, cu + 2, cu + 3))
                for r in range(4):
                    src = R + (r >> 1)
                    srcu = R + 2 + (r >> 1)
                    g, u, t = R + 4 + r, R + 8 + r, R + 12 + r
                    if r & 1:
                        a('v_and_b32 v%d, 0xffff0000, v%d' % (g, src))
                        a('v_and_b32 v%d, 0xffff0000, v%d' % (u, srcu))
                    else:
                        a('v_lshlrev_b32 v%d, 16, v%d' % (g, src))
                        a('v_lshlrev_b32 v%d, 16, v%d' % (u, srcu))
                for r in range(4):
                    g, t = R + 4 + r, R + 12 + r
                    a('v_mul_f32 v%d, v%d, v%d' % (t, g, g))
                    a('v_mul_f32 v%d, s26, v%d' % (t, t))
                    a('v_fma_f32 v%d, v%d, v%d, v%d' % (t, t, g, g))
                    a('v_mul_f32 v%d, s27, v%d' % (t, t))
                    a('v_sub_f32 v%d, 0, v%d' % (t, t))
                    a('v_min_f32 v%d, 0x42fc0000, v%d' % (t, t))
                for r in range(4):
                    t = R + 12 + r
                    a('v_exp_f32 v%d, v%d' % (t, t))
                for r in range(4):
                    t = R + 12 + r
                    a('v_add_f32 v%d, 1.0, v%d' % (t, t))
                for r in range(4):
                    t = R + 12 + r
                    a('v_rcp_f32 v%d, v%d' % (t, t))
                a.nop(1)
                for r in range(4):
                    g, t = R + 4 + r, R + 12 + r
                    a('v_mul_f32 v%d, v%d, v%d' % (g, g, t))
                a('v_cvt_pk_bf16_f32 v%d, v%d, v%d' % (R, R + 4, R + 5))
                a('v_cvt_pk_bf16_f32 v%d, v%d, v%d' % (R + 1, R + 6, R + 7))
                for r in range(4):
                    src = R + (r >> 1)
                    g = R + 4 + r
                    if r & 1:
                        a('v_and_b32 v%d, 0xffff0000, v%d' % (g, src))
                    else:
                        a('v_lshlrev_b32 v%d, 16, v%d' % (g, src))
                    a('v_mul_f32 v%d, v%d, v%d' % (g, g, R + 8 + r))
                t = E + 4 + 2 * p
                a('v_cvt_pk_bf16_f32 v%d, v%d, v%d' % (t, R + 4, R + 5))
                a('v_cvt_pk_bf16_f32 v%d, v%d, v%d' % (t + 1, R + 6, R + 7))
                a('buffer_store_dwordx2 %s, v%d, s[4:7], s25 offen offset:%d' % (vr(t, 2), E + 3, p * 32))
    elif epi == 'final':
        a('v_mul_u32_u24 v%d, 1280, v%d' % (E + 2, E + 1))
        a('v_lshl_add_u32 v%d, v%d, 1, v%d' % (E + 2, E, E + 2))
        a('s_mov_b32 s24, %d' % WS['HB'])
        for yi in range(4):
            a('s_add_u32 s25, s24, %d' % (yi * 16 * 1280))
            a('s_mov_b32 s26, %d' % (yi * 16 * 1280))
            for xi in range(4):
                a('buffer_load_dwordx2 %s, v%d, s[4:7], s25 offen offset:%d' % (vr(E + 8 + 2 * xi, 2), E + 2, xi * 32))
            a('s_waitcnt vmcnt(0)')
            for xi in range(4):
                c = ACC + (xi * 4 + yi) * 4
                R = E + 16
                hb = E + 8 + 2 * xi
                a('v_cvt_pk_bf16_f32 v%d, v%d, v%d' % (R, c, c + 1))
                a('v_cvt_pk_bf16_f32 v%d, v%d, v%d' % (R + 1, c + 2, c + 3))
                for r in range(4):
                    op = ('v_and_b32 v%d, 0xffff0000, v%d' if (r & 1) else 'v_lshlrev_b32 v%d, 16, v%d')
                    a(op % (R + 2 + r, R + (r >> 1)))
                    a(op % (R + 6 + r, hb + (r >> 1)))
                    a('v_add_f32 v%d, v%d, v%d' % (R + 2 + r, R + 2 + r, R + 6 + r))
                t = E + 4 + 2 * (xi & 1)
                a('v_cvt_pk_bf16_f32 v%d, v%d, v%d' % (t, R + 2, R + 3))
                a('v_cvt_pk_bf16_f32 v%d, v%d, v%d' % (t + 1, R + 4, R + 5))
                a('buffer_store_dwordx2 %s, v%d, s[8:11], s26 offen offset:%d' % (vr(t, 2), E + 2, xi * 32))
    a.label('%s_done' % name)
    a('s_endpgm')
    return name, kernel_desc(name, 184, 40), grid


GEMM_QKV = dict(name='gemm_qkv_kernel', K=640, nxt=144, nyt=16, x_base=WS['WQKVT'], x_stride=1280,
                y_base=WS['XN'], y_stride=1280, epi='qkv')
GEMM_B = dict(name='gemm_b_kernel', K=192, nxt=16, nyt=5, nbatch=32,
              x_base=WS['QKV'] + 2 * HD * 2, x_stride=36864, x_bstride=384,
              y_base=WS['WOT'], y_stride=384, y_bstride=245760, epi='wt')
GEMM_FFN1 = dict(name='ffn1_kernel', K=640, nxt=24, nyt=16, x_base=WS['WGUT'], x_stride=1280,
                 y_base=WS['HN'], y_stride=1280, epi='geglu')
GEMM_FFN2 = dict(name='ffn2_kernel', K=1536, nxt=5, nyt=16, x_base=WS['WDT'], x_stride=3072,
                 y_base=WS['G'], y_stride=3072, epi='final')
```

```python
from gen_common import *

def ln_body(a, srd_in, srd_out):
    for i in range(5):
        a('buffer_load_dword v%d, v1, %s, 0 offen offset:%d' % (3 + i, sr(srd_in, 4), 256 * i))
    a('s_waitcnt vmcnt(0)')
    for i in range(5):
        a('v_lshlrev_b32 v%d, 16, v%d' % (8 + 2 * i, 3 + i))
        a('v_and_b32 v%d, 0xffff0000, v%d' % (9 + 2 * i, 3 + i))
    a('v_add_f32 v18, v8, v9')
    for i in range(2, 10):
        a('v_add_f32 v18, v18, v%d' % (8 + i))
    wave_reduce(a, 'add', 18, 19, 20)
    a('v_mov_b32 v19, 0x%08x' % f32bits(1.0 / 640.0))
    a('v_mul_f32 v19, s20, v19')
    a('v_sub_f32 v20, v8, v19')
    a('v_mul_f32 v18, v20, v20')
    for i in range(1, 10):
        a('v_sub_f32 v20, v%d, v19' % (8 + i))
        a('v_fmac_f32 v18, v20, v20')
    wave_reduce(a, 'add', 18, 21, 21)
    a('v_mov_b32 v20, 0x%08x' % f32bits(1.0 / 640.0))
    a('v_mul_f32 v20, s21, v20')
    a('v_cvt_pk_bf16_f32 v21, v19, v20')
    a('v_lshlrev_b32 v19, 16, v21')
    a('v_and_b32 v20, 0xffff0000, v21')
    a('v_add_f32 v20, 0x%08x, v20' % f32bits(1e-5))
    a('v_cvt_pk_bf16_f32 v20, v20, v20')
    a('v_lshlrev_b32 v20, 16, v20')
    a('v_sqrt_f32 v20, v20')
    a.nop(1)
    a('v_cvt_pk_bf16_f32 v20, v20, v20')
    a('v_lshlrev_b32 v20, 16, v20')
    a('v_rcp_f32 v20, v20')
    a.nop(1)
    for i in range(5):
        a('v_sub_f32 v22, v%d, v19' % (8 + 2 * i))
        a('v_sub_f32 v23, v%d, v19' % (9 + 2 * i))
        a('v_cvt_pk_bf16_f32 v24, v22, v23')
        a('v_lshlrev_b32 v22, 16, v24')
        a('v_and_b32 v23, 0xffff0000, v24')
        a('v_mul_f32 v22, v22, v20')
        a('v_mul_f32 v23, v23, v20')
        a('v_cvt_pk_bf16_f32 v%d, v22, v23' % (25 + i))
    for i in range(5):
        a('buffer_store_dword v%d, v2, %s, 0 offen offset:%d' % (25 + i, sr(srd_out, 4), 256 * i))


JOBS = [
    ('Wq', 12288, 10, 96, 'qkv0'),
    ('Wk', 12288, 10, 96, 'qkv1'),
    ('Wv', 12288, 10, 96, 'qkv2'),
    ('Wo', 1280, 96, 10, 'wo'),
    ('Wg', 3072, 10, 24, 'gate'),
    ('Wu', 3072, 10, 24, 'up'),
    ('Wd', 1280, 24, 10, 'down'),
]
NT_TILES = sum(j[2] * j[3] for j in JOBS)
N_LN_WG = S // 4
N_FILL_WG = SENT_BYTES // 16384
PREP_GRID = NT_TILES + N_LN_WG + N_FILL_WG + 1
PREP_LDS = 64 * 132


def gen_prep(a):
    name = 'prep_kernel'
    kernel_begin(a, name)
    load_srd(a, 4, 'ws')
    load_srd(a, 12, 'x')
    a('s_waitcnt lgkmcnt(0)')
    fin_srd(a, 4, 'ws')
    fin_srd(a, 12, 'x')
    a('s_cmp_ge_u32 s2, %d' % PREP_GRID)
    a('s_cbranch_scc1 prep_done')
    a('s_cmp_ge_u32 s2, %d' % NT_TILES)
    a('s_cbranch_scc1 prep_not_tr')
    base = 0
    for ji, (key, sstride, nrt, nct, kind) in enumerate(JOBS):
        nxt = 'prep_job%d' % (ji + 1)
        a.label('prep_job%d' % ji)
        a('s_cmp_ge_u32 s2, %d' % (base + nrt * nct))
        a('s_cbranch_scc1 %s' % nxt)
        load_srd(a, 8, key)
        a('s_sub_u32 s21, s2, %d' % base)
        a('s_mul_hi_u32 s22, s21, %d' % ((2 ** 32 + nct - 1) // nct))
        a('s_mul_i32 s23, s22, %d' % nct)
        a('s_sub_u32 s23, s21, s23')
        a('s_mul_i32 s16, s22, %d' % (64 * sstride))
        a('s_lshl_b32 s24, s23, 7')
        a('s_add_u32 s16, s16, s24')
        a('s_mov_b32 s17, %d' % sstride)
        a('s_mov_b32 s20, 0')
        if kind.startswith('qkv'):
            m = int(kind[3])
            a('s_mul_i32 s18, s23, %d' % (64 * 1280))
            a('s_lshl_b32 s24, s22, 7')
            a('s_add_u32 s18, s18, s24')
            a('s_add_u32 s18, s18, %d' % (WS['WQKVT'] + m * HD * 1280))
            a('s_mov_b32 s19, 1280')
        elif kind == 'wo':
            a('s_mul_hi_u32 s24, s22, %d' % ((2 ** 32 + 2) // 3))
            a('s_mul_i32 s25, s24, 3')
            a('s_sub_u32 s25, s22, s25')
            a('s_mul_i32 s18, s24, 245760')
            a('s_mul_i32 s24, s23, %d' % (64 * 384))
            a('s_add_u32 s18, s18, s24')
            a('s_lshl_b32 s24, s25, 7')
            a('s_add_u32 s18, s18, s24')
            a('s_add_u32 s18, s18, %d' % WS['WOT'])
            a('s_mov_b32 s19, 384')
        elif kind in ('gate', 'up'):
            a('s_mul_i32 s18, s23, %d' % (128 * 1280))
            a('s_lshl_b32 s24, s22, 7')
            a('s_add_u32 s18, s18, s24')
            a('s_add_u32 s18, s18, %d' % (WS['WGUT'] + (16 * 1280 if kind == 'up' else 0)))
            a('s_mov_b32 s19, 1280')
            a('s_mov_b32 s20, 1')
        elif kind == 'down':
            a('s_mul_i32 s18, s23, %d' % (64 * 3072))
            a('s_lshl_b32 s24, s22, 7')
            a('s_add_u32 s18, s18, s24')
            a('s_add_u32 s18, s18, %d' % WS['WDT'])
            a('s_mov_b32 s19, 3072')
        a('s_waitcnt lgkmcnt(0)')
        fin_srd(a, 8, key)
        a('s_branch prep_tr_body')
        base += nrt * nct
    a.label('prep_job%d' % len(JOBS))
    a('s_branch prep_done')
    a.label('prep_tr_body')
    a('v_lshrrev_b32 v1, 3, v0')
    a('v_and_b32 v2, 7, v0')
    a('v_mul_lo_u32 v3, v1, s17')
    a('v_lshl_add_u32 v3, v2, 4, v3')
    a('s_lshl_b32 s24, s17, 5')
    a('s_add_u32 s25, s16, s24')
    a('buffer_load_dwordx4 v[4:7], v3, s[8:11], s16 offen')
    a('buffer_load_dwordx4 v[8:11], v3, s[8:11], s25 offen')
    a('v_mul_u32_u24 v12, 132, v1')
    a('v_lshl_add_u32 v12, v2, 4, v12')
    a('s_waitcnt vmcnt(0)')
    for i in range(4):
        a('ds_write_b32 v12, v%d offset:%d' % (4 + i, 4 * i))
        a('ds_write_b32 v12, v%d offset:%d' % (8 + i, 32 * 132 + 4 * i))
    a('s_waitcnt lgkmcnt(0)')
    a('s_barrier')
    a('v_lshrrev_b32 v1, 2, v0')
    a('v_and_b32 v2, 3, v0')
    a('v_mul_u32_u24 v12, %d, v2' % (16 * 132))
    a('v_lshl_add_u32 v12, v1, 1, v12')
    for i in range(8):
        a('ds_read_u16 v%d, v12 offset:%d' % (4 + i, (2 * i) * 132))
        a('ds_read_u16 v%d, v12 offset:%d' % (16 + i, (2 * i + 1) * 132))
    a('v_lshrrev_b32 v13, 4, v1')
    a('v_lshlrev_b32 v13, 5, v13')
    a('v_and_b32 v14, 15, v1')
    a('v_add_u32 v13, v13, v14')
    a('s_cmp_eq_u32 s20, 1')
    a('s_cselect_b64 s[26:27], -1, 0')
    a('v_cndmask_b32 v1, v1, v13, s[26:27]')
    a('v_mul_lo_u32 v3, v1, s19')
    a('v_lshl_add_u32 v3, v2, 5, v3')
    a('s_waitcnt lgkmcnt(0)')
    for i in range(8):
        a('v_lshl_or_b32 v%d, v%d, 16, v%d' % (4 + i, 16 + i, 4 + i))
    a('buffer_store_dwordx4 v[4:7], v3, s[4:7], s18 offen')
    a('buffer_store_dwordx4 v[8:11], v3, s[4:7], s18 offen offset:16')
    a('s_branch prep_done')
    a.label('prep_not_tr')
    a('s_cmp_ge_u32 s2, %d' % (NT_TILES + N_LN_WG))
    a('s_cbranch_scc1 prep_fill')
    a('s_sub_u32 s16, s2, %d' % NT_TILES)
    a('s_lshl_b32 s16, s16, 2')
    a('v_lshrrev_b32 v1, 6, v0')
    a('v_add_u32 v1, s16, v1')
    a('v_mul_u32_u24 v1, 1280, v1')
    a('v_and_b32 v2, 63, v0')
    a('v_lshl_add_u32 v1, v2, 2, v1')
    a('v_add_u32 v2, %d, v1' % WS['XN'])
    ln_body(a, 12, 4)
    a('s_branch prep_done')
    a.label('prep_fill')
    a('s_cmp_ge_u32 s2, %d' % (NT_TILES + N_LN_WG + N_FILL_WG))
    a('s_cbranch_scc1 prep_mem0')
    a('s_sub_u32 s16, s2, %d' % (NT_TILES + N_LN_WG))
    a('s_lshl_b32 s16, s16, 14')
    a('s_add_u32 s16, s16, %d' % WS['SENT'])
    a('v_lshlrev_b32 v1, 4, v0')
    for i in range(4):
        a('v_mov_b32 v%d, -1' % (4 + i))
    for i in range(4):
        a('s_add_u32 s17, s16, %d' % (4096 * i))
        a('buffer_store_dwordx4 v[4:7], v1, s[4:7], s17 offen')
    a('s_branch prep_done')
    a.label('prep_mem0')
    load_srd(a, 8, 'mem0')
    a('s_waitcnt lgkmcnt(0)')
    fin_srd(a, 8, 'mem0')
    a('v_lshlrev_b32 v1, 4, v0')
    a('s_mov_b32 s16, %d' % WS['MEM'])
    for i in range(3):
        a('buffer_load_dwordx4 v[%d:%d], v1, s[8:11], 0 offen offset:%d' % (4 + 4 * i, 7 + 4 * i, 0) if i == 0 else
          'buffer_load_dwordx4 v[%d:%d], v%d, s[8:11], 0 offen' % (4 + 4 * i, 7 + 4 * i, 1 + i))
        if i < 2:
            a('v_add_u32 v%d, 4096, v%d' % (2 + i, 1 + i))
    a('s_waitcnt vmcnt(0)')
    a('buffer_store_dwordx4 v[4:7], v1, s[4:7], s16 offen')
    a('buffer_store_dwordx4 v[8:11], v2, s[4:7], s16 offen')
    a('v_cmp_gt_u32 vcc, 128, v0')
    a('s_and_saveexec_b64 s[20:21], vcc')
    a('buffer_store_dwordx4 v[12:15], v3, s[4:7], s16 offen')
    a('s_mov_b64 exec, s[20:21]')
    a.label('prep_done')
    a('s_endpgm')
    return name, kernel_desc(name, 32, 40)


def gen_ln2(a):
    name = 'ln2_kernel'
    kernel_begin(a, name)
    load_srd(a, 4, 'ws')
    a('s_waitcnt lgkmcnt(0)')
    fin_srd(a, 4, 'ws')
    a('s_cmp_ge_u32 s2, %d' % N_LN_WG)
    a('s_cbranch_scc1 ln2_done')
    a('s_lshl_b32 s16, s2, 2')
    a('v_lshrrev_b32 v1, 6, v0')
    a('v_add_u32 v1, s16, v1')
    a('v_mul_u32_u24 v1, 1280, v1')
    a('v_and_b32 v2, 63, v0')
    a('v_lshl_add_u32 v1, v2, 2, v1')
    a('v_add_u32 v2, %d, v1' % WS['HN'])
    a('v_add_u32 v1, %d, v1' % WS['HB'])
    ln_body(a, 4, 4)
    a.label('ln2_done')
    a('s_endpgm')
    return name, kernel_desc(name, 32, 40)
```

```python
import sys
from gen_common import *
from gen_prep import *
from gen_gemm import *
from gen_attn import *
from gen_chain import *

OUT = 'sequential_preLN__memory_aug_recurrent_mem_tr__glu_gated_geglu__prompt.s'

def main(out=OUT):
    a = Asm()
    descs = []
    launches = []
    n, d = gen_prep(a); descs.append(d); launches.append((n, PREP_GRID, PREP_LDS))
    for cfg in (GEMM_QKV, GEMM_B):
        n, d, g = gen_gemm(a, cfg); descs.append(d); launches.append((n, g, GEMM_LDS))
    n, d, g = gen_chain(a); descs.append(d); launches.append((n, g, CHAIN_LDS))
    n, d, g = gen_attnp(a); descs.append(d); launches.append((n, g, 0))
    n, d, g = gen_attno(a); descs.append(d); launches.append((n, g, 0))
    n, d = gen_ln2(a); descs.append(d); launches.append((n, N_LN_WG, 0))
    for cfg in (GEMM_FFN1, GEMM_FFN2):
        n, d, g = gen_gemm(a, cfg); descs.append(d); launches.append((n, g, GEMM_LDS))
    hdr = ['; generated by work/gen.py (hand-written generator); multi-launch implementation']
    for n, g, lds in launches:
        hdr.append('; @launch kernel=%s grid=(%d,1,1) block=(256,1,1) lds=%d' % (n, g, lds))
    txt = '\n'.join(hdr) + '\n.amdgcn_target "amdgcn-amd-amdhsa--gfx950"\n.text\n' + a.text()
    txt += '.section .rodata,"a"\n'
    for d in descs:
        txt += '.p2align 6\n' + d + '\n'
    open(out, 'w').write(txt)
    print('wrote', out, len(txt), 'bytes; WS_END', WS_END)
    for k, v in WS.items():
        print('  ', k, v)

if __name__ == '__main__':
    main(*sys.argv[1:])
```
